```python
import torch

def _softmax(x, axis=-1):
    return torch.softmax(x, dim=axis)
def _gelu(x):
    return torch.nn.functional.gelu(x, approximate="tanh")
def _silu(x):
    return torch.nn.functional.silu(x)
def _sigmoid(x):
    return torch.sigmoid(x)
def _layernorm(x, axis=-1, eps=1e-5):
    m = x.mean(dim=axis, keepdim=True)
    v = x.var(dim=axis, keepdim=True, unbiased=False)
    return (x - m) / torch.sqrt(v + eps)
def _scatter_add(tgt, idx, src, axis=0):
    return tgt.clone().index_add_(axis, idx, src)
def _segment_sum(src, seg, n):
    out = torch.zeros((n,) + src.shape[1:], dtype=src.dtype)
    return out.index_add_(0, seg, src)
def _pad(x, pw):
    flat = tuple(v for pair in reversed(pw) for v in pair)
    return torch.nn.functional.pad(x, flat)

kernel_name = 'sequential_preLN__linear_attn_block__glu_gated_reglu__prompt'

def setup_inputs():

    _w = (lambda a: (lambda t: t.to(torch.bfloat16) if t.is_floating_point() else t)(torch.as_tensor(a)))
    def _A_setup():
        B, S, D = 1, 2048, 640
        return {
            "x": _w((lambda *s: torch.randn(*s, dtype=torch.bfloat16) * 0.05)(B, S, D)),
            "wqkv": _w((lambda *s: torch.randn(*s, dtype=torch.bfloat16) * 0.05)(D, 3 * D)),
            "wo": _w((lambda *s: torch.randn(*s, dtype=torch.bfloat16) * 0.05)(D, D)),
        }
    _A_in = _A_setup()

    def _B_setup():
        B, S, D, F = 1, 2048, 640, 1536
        return {
            "x": _w((lambda *s: torch.randn(*s, dtype=torch.bfloat16) * 0.05)(B, S, D)),
            "W_gate": _w((lambda *s: torch.randn(*s, dtype=torch.bfloat16) * 0.2)(D, F) * (2.0 / D) ** 0.5),
            "W_up": _w((lambda *s: torch.randn(*s, dtype=torch.bfloat16) * 0.2)(D, F) * (2.0 / D) ** 0.5),
            "W_down": _w((lambda *s: torch.randn(*s, dtype=torch.bfloat16) * 0.2)(F, D) * (1.0 / F) ** 0.5),
        }
    _B_in = _B_setup()

    return {
        "A_x": _A_in["x"],
        "A_wqkv": _A_in["wqkv"],
        "A_wo": _A_in["wo"],
        "B_x": _B_in["x"],
        "B_W_gate": _B_in["W_gate"],
        "B_W_up": _B_in["W_up"],
        "B_W_down": _B_in["W_down"],
    }

def reference(A_x, A_wqkv, A_wo, B_x, B_W_gate, B_W_up, B_W_down):
    def _A_ref(x, wqkv, wo):
        B, S, D = x.shape
        H = 32; Dh = D // H
        qkv = (lambda x, *d: x.permute(*d))((x @ wqkv).reshape(B, S, 3, H, Dh), 2, 0, 3, 1, 4)
        q, k, v = qkv[0], qkv[1], qkv[2]
        phi = lambda t: torch.where(t > 0, t + 1, torch.exp(t)) + 1e-6
        pq, pk = phi(q), phi(k)
        kv = torch.einsum("bhsd,bhse->bhde", pk, v)
        z = torch.einsum("bhsd->bhd", pk)
        num = torch.einsum("bhqd,bhde->bhqe", pq, kv)
        den = torch.einsum("bhqd,bhd->bhq", pq, z)[..., None] + 1e-6
        o = num / den
        return (lambda x, *d: x.permute(*d))(o, 0, 2, 1, 3).reshape(B, S, D) @ wo

    def _B_ref(x, W_gate, W_up, W_down):
        gate = torch.einsum("bsd,df->bsf", x, W_gate)
        up = torch.einsum("bsd,df->bsf", x, W_up)
        gate = gate * (lambda x, dt: x.to(dt))(gate > 0, gate.dtype)
        h = gate * up
        return torch.einsum("bsf,fd->bsd", h, W_down)

    x = A_x
    h = x + _A_ref(_layernorm(x, axis=-1), A_wqkv, A_wo)
    h2 = h + _B_ref(_layernorm(h, axis=-1), B_W_gate, B_W_up, B_W_down)
    return h2
```

```python
NAME = "sequential_preLN__linear_attn_block__glu_gated_reglu__prompt"
class Asm:
    def __init__(self):
        self.l = []
        self.uid = 0
    def __call__(self, s=""):
        for x in s.split("\n"):
            x = x.strip()
            if x: self.l.append(("" if x.endswith(":") else "    ") + x)
    def label(self, p="L"):
        self.uid += 1
        return "%s_%d" % (p, self.uid)
    def text(self):
        return "\n".join(self.l) + "\n"
def kernel_begin(a, name):
    a.l.append(".text"); a.l.append(".globl %s" % name); a.l.append(".p2align 8")
    a.l.append(".type %s,@function" % name); a.l.append("%s:" % name)
def kernel_desc(name, vgpr, accum, sgpr=102):
    return """.section .rodata,"a"
.p2align 6
.amdhsa_kernel %s
  .amdhsa_next_free_vgpr %d
  .amdhsa_next_free_sgpr %d
  .amdhsa_accum_offset %d
  .amdhsa_group_segment_fixed_size 0
  .amdhsa_kernarg_size 80
  .amdhsa_user_sgpr_count 2
  .amdhsa_user_sgpr_kernarg_segment_ptr 1
  .amdhsa_system_sgpr_workgroup_id_x 1
.end_amdhsa_kernel
""" % (name, vgpr, sgpr, accum)
HDR = '.amdgcn_target "amdgcn-amd-amdhsa--gfx950"\n'
def srd(a, d, base, nbytes):
    a("s_mov_b32 s%d, s%d" % (d, base)); a("s_and_b32 s%d, s%d, 0xffff" % (d + 1, base + 1))
    a("s_mov_b32 s%d, 0x%x" % (d + 2, nbytes)); a("s_mov_b32 s%d, 0x20000" % (d + 3))
```

```python
from asmlib import *
WO, WGU, WD, O_, H_, ACT, PART, STAT, FLAG, WSZ = 0x0, 0x100000, 0x500000, 0x700000, 0xA00000, 0xD00000, 0x1300000, 0x1400000, 0x1500000, 0x1600000
SX, SWQ, SWS, SJ1, SJ2, SOUT = 8, 12, 16, 20, 24, 28
SDBG = 32
sRB, sJ, sW, sT = 34, 35, 36, 40
def R(p, i, n=1):
    return "%s%d" % (p, i) if n == 1 else "%s[%d:%d]" % (p, i, i + n - 1)
def V(i, n=1): return R("v", i, n)
def A(i, n=1): return R("a", i, n)
def mfma(d, a, b, c): return "v_mfma_f32_16x16x32_bf16 %s, %s, %s, %s" % (d, a, b, c)
def weave(a, main, fill, lead=0):
    n = max(len(main) - lead, 1); k = 0
    for i, m in enumerate(main):
        a(m)
        if i >= lead:
            t = (len(fill) * (i - lead + 1) + n - 1) // n
            while k < t: a(fill[k]); k += 1
    while k < len(fill): a(fill[k]); k += 1
def prologue(a, cfg, ptrs):
    end = a.label("END")
    a("s_cmp_ge_u32 s2, 256\ns_cbranch_scc0 %s\ns_endpgm\n%s:" % (end, end))
    for slot, d, nb in ptrs:
        a("s_load_dwordx2 s[%d:%d], s[0:1], %d" % (d, d + 1, slot))
    a("v_lshrrev_b32 v1, 6, v0\nv_and_b32 v0, 63, v0\ns_nop 0\nv_readfirstlane_b32 s%d, v1" % sW)
    a("s_and_b32 s3, s2, 7\ns_lshr_b32 s4, s2, 3")
    if cfg["map"] == "8x1":
        a("s_lshl_b32 s3, s3, 1\ns_and_b32 s5, s4, 1\ns_add_u32 s%d, s3, s5\ns_lshr_b32 s%d, s4, 1" % (sRB, sJ))
    else:
        a("s_lshr_b32 s5, s3, 1\ns_lshl_b32 s5, s5, 2\ns_and_b32 s6, s4, 3\ns_add_u32 s%d, s5, s6" % sRB)
        a("s_and_b32 s5, s3, 1\ns_lshl_b32 s5, s5, 3\ns_lshr_b32 s6, s4, 2\ns_add_u32 s%d, s5, s6" % sJ)
    a("s_waitcnt lgkmcnt(0)")
    for slot, d, nb in ptrs:
        if nb:
            a("s_and_b32 s%d, s%d, 0xffff\ns_mov_b32 s%d, 0x%x\ns_mov_b32 s%d, 0x20000" % (d + 1, d + 1, d + 2, nb, d + 3))
def smod(a, d, s, m, tmp):
    mul = (65536 + m - 1) // m
    a("s_mul_i32 s%d, s%d, %d\ns_lshr_b32 s%d, s%d, 16\ns_mul_i32 s%d, s%d, %d\ns_sub_u32 s%d, s%d, s%d" % (tmp, s, mul, tmp, tmp, tmp, tmp, m, d, s, tmp))
def dma(m0sreg, m0imm, voff, srd_, soff, fl=""):
    return ["s_add_u32 m0, s%d, %d" % (m0sreg, m0imm), "buffer_load_dwordx4 v%d, s[%d:%d], s%d offen %s lds" % (voff, srd_, srd_ + 3, soff, fl)]
def stamp(a, cfg, idx):
    if cfg.get("stamp"): a("s_memtime s[%d:%d]" % (66 + 2 * idx, 67 + 2 * idx))
def stamp_dump(a, cfg, kidx, n):
    if not cfg.get("stamp"): return
    a("s_memrealtime s[98:99]\ns_lshl_b32 s100, s2, 2\ns_add_u32 s100, s100, s%d\ns_lshl_b32 s100, s100, 6\ns_add_u32 s100, s100, %d" % (sW, FLAG + 0x10000 * (kidx + 1)))
    a("s_waitcnt lgkmcnt(0)\nv_mov_b32 v1, 0\ns_mov_b64 exec, 1")
    for i in range(n):
        a("v_mov_b32 v2, s%d\nbuffer_store_dword v2, v1, s[%d:%d], s100 offen offset:%d" % (66 + 2 * i, SWS, SWS + 3, i * 4))
    a("v_mov_b32 v2, s98\nbuffer_store_dword v2, v1, s[%d:%d], s100 offen offset:60" % (SWS, SWS + 3))
```

```python
from gen_common import *
SLOT = 53248
vXA, vKV, vQ, vJ, vXR, vWR, vT = 2, 4, 9, 14, 22, 24, 26
vONE, vKVA, vCS, vRS, vG, vWB, vTAB, vTABZ = 40, 44, 84, 104, 112, 120, 160, 170
vMEAN, vRSTD, vRL, vML, vF, vP, vPQ = 180, 188, 196, 204, 212, 44, 232
PAIRS = [(0, 2), (1, 2), (0, 3), (1, 3), (2, 3), (1, 4), (2, 4)]
def rowk(a, q, A_, B_, stride, dst, extra):
    t = vT
    a("v_mul_u32_u24 v%d, 6554, v%d\nv_lshrrev_b32 v%d, 16, v%d" % (t + 2, q, t + 2, t + 2))
    a("v_mul_u32_u24 v%d, 10, v%d\nv_sub_u32 v%d, v%d, v%d" % (t + 1, t + 2, t + 1, q, t + 1))
    a("v_bfe_u32 v%d, v%d, 2, 2\nv_mul_u32_u24 v%d, %s, v%d" % (t + 3, t + 2, t + 3, A_, t + 3))
    a("v_lshrrev_b32 v%d, 4, v%d\nv_mad_u32_u24 v%d, %s, v%d, v%d" % (t + 4, t + 2, t + 3, B_, t + 4, t + 3))
    a("v_and_b32 v%d, 3, v%d\nv_add_u32 v%d, v%d, v%d" % (t + 4, t + 2, t + 3, t + 3, t + 4))
    a("v_mul_u32_u24 v%d, %s, v%d\nv_lshl_add_u32 v%d, v%d, 4, v%d" % (t + 3, stride, t + 3, dst, t + 1, t + 3))
def phi(a, acc, d, rl, rstd, tmp):
    return ["v_mul_f32 v%d, v%d, v%d" % (tmp, acc, rl), "v_exp_f32_e64 v%d, v%d clamp" % (tmp, tmp),
            "v_max_f32 v%d, 0, v%d" % (d, acc), "v_add_f32 v%d, 0x358637bd, v%d" % (tmp, tmp),
            "v_fma_f32 v%d, v%d, v%d, v%d" % (d, d, rstd, tmp)]
def zipl(ls):
    o = []
    for i in range(max(len(l) for l in ls)):
        for l in ls:
            if i < len(l): o.append(l[i])
    return o
def k1(a, cfg):
    sXO, sWO, sMX, sMW, sA, sB, sJB, sJD, sJT, sST = 44, 49, 54, 55, 56, 57, 58, 59, 60, 61
    prologue(a, cfg, [(0, SX, 2621440), (8, SWQ, 2457600), (72, SWS, WSZ), (64, SDBG, 0)])
    stamp(a, cfg, 0)
    a("v_lshrrev_b32 v%d, 3, v0\nv_mul_u32_u24 v%d, 1280, v%d" % (vT, vT, vT))
    a("v_lshrrev_b32 v%d, 4, v0\nv_and_b32 v%d, 7, v0\nv_xor_b32 v%d, v%d, v%d" % (vT + 1, vT + 2, vT + 1, vT + 1, vT + 2))
    a("v_lshl_add_u32 v%d, v%d, 4, v%d\nv_xor_b32 v%d, 4, v%d" % (vXA, vT + 1, vT, vT + 1, vT + 1))
    a("v_lshl_add_u32 v%d, v%d, 4, v%d\nv_add_u32 v%d, 10240, v%d" % (vXA + 1, vT + 1, vT, vXA + 1, vXA + 1))
    a("s_add_u32 s%d, s%d, s%d" % (sT, sRB, sJ)); smod(a, sT, sT, 5, sT + 1)
    if not cfg.get("rot", 1): a("s_mov_b32 s%d, 0" % sT)
    a("s_lshl_b32 s%d, s%d, 2\ns_add_u32 s%d, s%d, s%d\ns_mul_i32 s%d, s%d, 40960" % (sT + 1, sRB, sT + 1, sT + 1, sW, sT + 1, sT + 1))
    a("s_mul_i32 s%d, s%d, 80\ns_mov_b32 s%d, s%d" % (sT + 2, sJ, sST, sT))
    for p in range(5):
        a("s_lshl_b32 s%d, s%d, 8\ns_add_u32 s%d, s%d, s%d" % (sXO + p, sT, sXO + p, sXO + p, sT + 1))
        a("s_mul_i32 s%d, s%d, %d\ns_add_u32 s%d, s%d, s%d" % (sWO + p, sT, 128 * 3840, sWO + p, sWO + p, sT + 2))
        a("s_add_u32 s%d, s%d, 1\ns_cmp_eq_u32 s%d, 5\ns_cselect_b32 s%d, 0, s%d" % (sT, sT, sT, sT, sT))
    a("s_lshl_b32 s%d, s%d, 13\ns_mul_i32 s%d, s%d, 5120" % (sMX, sW, sMW, sW))
    def fillx(p):
        o = []; sl = (p % 3) * SLOT
        for cc in range(2):
            for i in range(4):
                d = dma(sMX, sl + cc * 4096 + i * 1024, vXA + (i & 1), SX, sT)
                o += [d[0], "s_add_u32 s%d, s%d, %d" % (sT, sXO + p, cc * 128 + (i >> 1) * 20480), d[1]]
        return o
    def fillw(p):
        o = ["s_mul_i32 s%d, s%d, %d" % (sT + 1, sW, 32 * 3840), "s_add_u32 s%d, s%d, s%d" % (sT + 1, sT + 1, sWO + p), "s_add_u32 s%d, s%d, 1280" % (sT + 1, sT + 1)]
        for n in range(5):
            d = dma(sMW, (p % 3) * SLOT + 32768 + n * 1024, vKV + n, SWQ, sT + 1)
            o += [d[0], "s_nop 0", d[1]]
        return o
    for l in fillx(0): a(l)
    a("s_mov_b32 s%d, 8\ns_mov_b32 s%d, 4\ns_movk_i32 s%d, 3840" % (sA, sB, sJB))
    for n in range(5):
        a("v_add_u32 v%d, %d, v0" % (vT, 64 * n))
        rowk(a, vT, "s%d" % sA, "s%d" % sB, "s%d" % sJB, vKV + n, 0)
        a("v_cmp_lt_u32 vcc, 4, v%d\nv_mov_b32 v%d, 1200\nv_cndmask_b32 v%d, 0, v%d, vcc\nv_mov_b32 v%d, %d\nv_cndmask_b32 v%d, 0, v%d, vcc" % (vT + 1, vT + 2, vT + 2, vT + 2, vT + 3, 122880 - 80, vT + 3, vT + 3))
        a("v_add_u32 v%d, v%d, v%d\nv_add_u32 v%d, v%d, v%d" % (vQ + n, vKV + n, vT + 3, vKV + n, vKV + n, vT + 2))
    for l in fillw(0) + fillx(1) + fillw(1) + fillx(2) + fillw(2): a(l)
    lg, lo_, ld, lj = a.label("JG"), a.label("JO"), a.label("JD"), a.label("JE")
    a("s_lshl_b32 s%d, s%d, 8\ns_add_u32 s%d, s%d, s2\ns_cmpk_lt_u32 s%d, 480\ns_cbranch_scc1 %s" % (sT, sW, sT, sT, sT, lg))
    a("s_mov_b32 s%d, 1\ns_cmpk_lt_u32 s%d, 640\ns_cbranch_scc0 %s" % (sJT, sT, ld))
    a("s_load_dwordx2 s[%d:%d], s[0:1], 16\ns_mov_b32 s%d, 819200" % (SJ1, SJ1 + 1, SJ1 + 2))
    a("s_sub_u32 s%d, s%d, 480\ns_lshr_b32 s%d, s%d, 3\ns_and_b32 s%d, s%d, 7" % (sT, sT, sT + 1, sT, sT, sT))
    a("s_mul_i32 s%d, s%d, 20\ns_add_u32 s%d, s%d, s%d\ns_mul_i32 s%d, s%d, 5120\ns_add_u32 s%d, s%d, %d" % (sJD, sT, sJD, sJD, sT + 1, sJD, sJD, sJD, sJD, WO))
    a("s_mul_i32 s%d, s%d, 40\ns_add_u32 s%d, s%d, 8\ns_sub_u32 s%d, s%d, 16\ns_mul_i32 s%d, s%d, 160" % (sT + 2, sT + 1, sT + 2, sT + 2, sT + 3, sT + 1, sT + 3, sT + 3))
    a("s_cmp_lt_u32 s%d, 16\ns_cselect_b32 s%d, s%d, s%d\ns_cselect_b32 s%d, 4, 40\ns_cselect_b32 s%d, 16, 4\ns_branch %s" % (sT + 1, sJB, sT + 2, sT + 3, sA, sB, lo_))
    a("%s:\ns_load_dwordx2 s[%d:%d], s[0:1], 48\ns_mov_b32 s%d, 1966080" % (ld, SJ1, SJ1 + 1, SJ1 + 2))
    a("s_sub_u32 s%d, s%d, 640\ns_lshr_b32 s%d, s%d, 3\ns_and_b32 s%d, s%d, 7" % (sT, sT, sT + 1, sT, sT, sT))
    a("s_mul_i32 s%d, s%d, 48\ns_add_u32 s%d, s%d, s%d\ns_mul_i32 s%d, s%d, 5120\ns_add_u32 s%d, s%d, %d" % (sJD, sT, sJD, sJD, sT + 1, sJD, sJD, sJD, sJD, WD))
    a("s_mul_i32 s%d, s%d, 21846\ns_lshr_b32 s%d, s%d, 16" % (sT + 2, sT + 1, sT + 2, sT + 2))
    a("s_mul_i32 s%d, s%d, 72\ns_lshl_b32 s%d, s%d, 3\ns_add_u32 s%d, s%d, s%d" % (sT + 2, sT + 2, sT + 3, sT + 1, sJB, sT + 2, sT + 3))
    a("s_mov_b32 s%d, 24\ns_mov_b32 s%d, 4" % (sA, sB))
    a("%s:\ns_mul_i32 s%d, s%d, 1280\ns_mul_i32 s%d, s%d, 160\ns_add_u32 s%d, s%d, s%d\ns_movk_i32 s%d, 1280" % (lo_, sJB, sJB, sT, sT, sJB, sJB, sT, sT + 2))
    for n in range(5):
        a("v_add_u32 v%d, %d, v0" % (vT, 64 * n))
        rowk(a, vT, "s%d" % sA, "s%d" % sB, "s%d" % (sT + 2), vJ + n, 0)
    a("s_waitcnt lgkmcnt(0)\ns_mov_b64 s[%d:%d], s[%d:%d]\ns_branch %s" % (SJ2, SJ2 + 1, SJ1, SJ1 + 1, lj))
    a("%s:\ns_load_dwordx2 s[%d:%d], s[0:1], 32\ns_load_dwordx2 s[%d:%d], s[0:1], 40\ns_mov_b32 s%d, 1966080\ns_mov_b32 s%d, 0" % (lg, SJ1, SJ1 + 1, SJ2, SJ2 + 1, SJ1 + 2, sJT))
    a("s_mul_i32 s%d, s%d, 2731\ns_lshr_b32 s%d, s%d, 16\ns_mul_i32 s%d, s%d, 24\ns_sub_u32 s%d, s%d, s%d" % (sT + 1, sT, sT + 1, sT + 1, sT + 2, sT + 1, sT + 2, sT, sT + 2))
    a("s_lshl_b32 s%d, s%d, 13\ns_add_u32 s%d, s%d, %d" % (sJD, sT, sJD, sJD, WGU))
    a("s_lshr_b32 s%d, s%d, 1\ns_mul_i32 s%d, s%d, 16\ns_lshl_b32 s%d, s%d, 5\ns_add_u32 s%d, s%d, s%d" % (sT, sT + 1, sT, sT, sT + 3, sT + 1, sT, sT, sT + 3))
    a("s_sub_u32 s%d, s%d, 16\ns_mul_i32 s%d, s%d, 160\ns_add_u32 s%d, s%d, 64" % (sT + 3, sT + 1, sT + 3, sT + 3, sT + 3, sT + 3))
    a("s_cmp_lt_u32 s%d, 16\ns_cselect_b32 s%d, s%d, s%d\ns_cselect_b32 s%d, 8, 4\ns_cselect_b32 s%d, 4, 0x50" % (sT + 1, sJB, sT, sT + 3, sA, sB))
    a("s_mul_i32 s%d, s%d, 3072\ns_lshl_b32 s%d, s%d, 7\ns_add_u32 s%d, s%d, s%d" % (sJB, sJB, sT + 2, sT + 2, sJB, sJB, sT + 2))
    a("v_lshrrev_b32 v%d, 5, v0\nv_mul_u32_u24 v%d, s%d, v%d\nv_bfe_u32 v%d, v0, 3, 2\nv_add_u32 v%d, v%d, v%d\nv_mul_u32_u24 v%d, 3072, v%d" % (vT, vT, sA, vT, vT + 1, vT, vT, vT + 1, vT, vT))
    a("v_lshrrev_b32 v%d, 4, v0\nv_and_b32 v%d, 7, v0\nv_xor_b32 v%d, v%d, v%d\nv_lshl_add_u32 v%d, v%d, 4, v%d\nv_xor_b32 v%d, 64, v%d" % (vT + 1, vT + 2, vT + 1, vT + 1, vT + 2, vJ, vT + 1, vT, vJ + 1, vJ))
    a("s_mul_i32 s%d, s%d, 6144\ns_mul_i32 s%d, s%d, 3072\nv_mov_b32 v%d, 0\nv_mov_b32 v%d, 0\nv_mov_b32 v%d, 0\ns_waitcnt lgkmcnt(0)" % (sA, sA, sB, sB, vJ + 2, vJ + 3, vJ + 4))
    a("%s:" % lj)
    a("s_and_b32 s%d, s%d, 0xffff\ns_mov_b32 s%d, 0x20000\ns_and_b32 s%d, s%d, 0xffff\ns_mov_b32 s%d, s%d\ns_mov_b32 s%d, 0x20000" % (SJ1 + 1, SJ1 + 1, SJ1 + 3, SJ2 + 1, SJ2 + 1, SJ2 + 2, SJ1 + 2, SJ2 + 3))
    a("v_and_b32 v%d, 15, v0\nv_lshrrev_b32 v%d, 4, v0\nv_lshrrev_b32 v%d, 1, v%d\nv_xor_b32 v%d, v%d, v%d" % (vT, vT + 1, vT + 2, vT, vT + 2, vT + 2, vT + 1))
    a("v_lshlrev_b32 v%d, 7, v%d\nv_lshl_add_u32 v%d, v%d, 4, v%d\nv_add_u32 v%d, s%d, v%d\nv_xor_b32 v%d, 64, v%d" % (vT + 3, vT, vXR, vT + 2, vT + 3, vXR, sMX, vXR, vXR + 1, vXR))
    a("v_lshrrev_b32 v%d, 2, v0\nv_mul_u32_u24 v%d, 160, v%d\nv_and_b32 v%d, 3, v0\nv_lshl_add_u32 v%d, v%d, 3, v%d\nv_add_u32 v%d, 32768, v%d" % (vT + 2, vT + 2, vT + 2, vT + 3, vWR + 1, vT + 3, vT + 2, vWR, vWR + 1))
    for i in range(4): a("v_mov_b32 v%d, 0x3f803f80" % (vONE + i))
    for ai in range(3):
        a("v_lshl_add_u32 v%d, v%d, 2, %d" % (vT + 2, vT + 1, 16 * ai))
        a("v_cmp_le_u32 vcc, 20, v%d\nv_cndmask_b32 v%d, 0, 20, vcc" % (vT + 2, vT + 3))
        a("v_sub_u32 v%d, v%d, v%d\nv_lshlrev_b32 v%d, 1, v%d" % (vT + 4, vT + 2, vT + 3, vT + 4, vT + 4))
        a("v_mad_u32_u24 v%d, v%d, 42, v%d" % (vT + 4, vT + 3, vT + 4))
        a("v_cmp_gt_u32 s[%d:%d], 40, v%d\nv_add_u32 v%d, 800, v%d\nv_mov_b32 v%d, 2048" % (sT, sT + 1, vT + 2, vT + 5, vT + 4, vT + 8))
        for i, (x, b) in enumerate(PAIRS):
            if x != ai: continue
            a("v_add_u32 v%d, %d, v%d\nv_sub_u32 v%d, v%d, v%d" % (vT + 6, 16 * (b - 2) - 8, vT, vT + 6, vT + 6, vT + 3))
            a("v_cmp_gt_u32 vcc, 20, v%d\ns_and_b64 vcc, vcc, s[%d:%d]\nv_mad_u32_u24 v%d, v%d, 40, v%d" % (vT + 6, sT, sT + 1, vT + 7, vT + 6, vT + 4))
            a("v_cndmask_b32 v%d, v%d, v%d, vcc\nv_cndmask_b32 v%d, v%d, v%d, vcc" % (vTAB + i, vT + 8, vT + 7, vTABZ + i, vT + 8, vT + 5))
        a("v_cmp_eq_u32 vcc, 0, v%d\ns_and_b64 vcc, vcc, s[%d:%d]\nv_cndmask_b32 v%d, v%d, v%d, vcc" % (vT, sT, sT + 1, vTAB + 7 + ai, vT + 8, vT + 5))
    def reads(i):
        p, e = divmod(i, 4); o = []
        for u in range(2):
            o.append("ds_read_b128 %s, v%d offset:%d" % (A((i * 2 + u) * 4, 4), vXR + (e & 1), (e >> 1) * 4096 + u * 2048))
        for T in range(5):
            for h in range(2):
                o.append("ds_read_b64_tr_b16 %s, v%d offset:%d" % (V(vWB + (i & 1) * 20 + T * 4 + h * 2, 2), vWR, e * 5120 + h * 2560 + T * 32))
        return o
    def mf(i):
        o = []; c = lambda r: "0" if i == 0 else V(r, 4)
        X = lambda u: A((i * 2 + u) * 4, 4); W = lambda T: V(vWB + (i & 1) * 20 + T * 4, 4)
        for u in range(2):
            o += [mfma(V(vRS + 4 * u, 4), X(u), V(vONE, 4), c(vRS + 4 * u)), mfma(V(vG + 4 * u, 4), X(u), X(u), c(vG + 4 * u))]
        for T in range(5):
            for u in range(2): o.append(mfma(V(vKVA + (u * 5 + T) * 4, 4), X(u), W(T), c(vKVA + (u * 5 + T) * 4)))
            o.append(mfma(V(vCS + T * 4, 4), V(vONE, 4), W(T), c(vCS + T * 4)))
        return o
    def fillq():
        o = []
        for bi in range(3):
            l = a.label("Q")
            if bi == 2: o += ["s_cmp_ge_u32 s%d, 2" % sW, "s_cbranch_scc1 %s" % l]
            o += ["s_cmp_ge_u32 s%d, 2" % sW, "s_cselect_b32 s%d, s%d, s%d" % (sT + 1, sWO + min(2 * bi + 1, 4), sWO + 2 * bi),
                  "s_and_b32 s%d, s%d, 1" % (sT + 2, sW), "s_mul_i32 s%d, s%d, %d" % (sT + 2, sT + 2, 64 * 3840), "s_add_u32 s%d, s%d, s%d" % (sT + 1, sT + 1, sT + 2)]
            blk = []
            for n in range(5):
                d = dma(sMW, 2 * SLOT + bi * 20480 + n * 1024, vQ + n, SWQ, sT + 1); blk += [d[0], "s_nop 0", d[1]]
            if bi == 2: o = o[:-7] + ["\n".join(o[-7:] + blk + [l + ":"])]
            else: o += blk
        return o
    def fillj():
        l1, l2 = a.label("J"), a.label("J"); o = ["s_cmp_eq_u32 s%d, 0" % sJT, "s_cbranch_scc1 %s" % l1]
        for n in range(5):
            d = dma(sMX, n * 1024, vJ + n, SJ1, sJB); o += [d[0], "s_nop 0", d[1]]
        o += ["s_branch %s" % l2, l1 + ":"]
        for n in range(4):
            o += ["s_mov_b32 s%d, s%d" % (sT + 1, sJB)]
            if n & 1: o += ["s_add_u32 s%d, s%d, s%d" % (sT + 1, sT + 1, sA)]
            if n >> 1: o += ["s_add_u32 s%d, s%d, s%d" % (sT + 1, sT + 1, sB)]
            for m in range(2):
                d = dma(sMX, m * 4096 + n * 1024, vJ + m, SJ2 if m else SJ1, sT + 1); o += [d[0], "s_nop 0", d[1]]
        return ["\n".join(o + [l2 + ":"])]
    grp = lambda l, n: ["\n".join(l[i:i + n]) for i in range(0, len(l), n)]
    stamp(a, cfg, 1)
    a("s_waitcnt vmcnt(26)\ns_barrier")
    stamp(a, cfg, 2)
    for l in reads(0): a(l)
    for i in range(20):
        a("s_waitcnt lgkmcnt(0)")
        fl = []
        if i < 19 and (i + 1) % 4 == 0:
            p = (i + 1) // 4
            a("s_waitcnt vmcnt(%d)\ns_barrier" % (10 if p == 4 else 13))
            stamp(a, cfg, 2 + p)
            dlt = SLOT if p != 3 else -2 * SLOT
            for r in (vXR, vXR + 1, vWR): a("v_add_u32 v%d, %d, v%d" % (r, dlt & 0xffffffff, r))
            fl = grp(fillx(p + 2), 3) + grp(fillw(p + 2), 3) if p < 3 else (fillq() if p == 3 else fillj())
        weave(a, mf(i), (reads(i + 1) if i < 19 else []) + fl)
    stamp(a, cfg, 7)
    a("v_lshrrev_b32 v%d, 4, v0\nv_mul_u32_u24 v%d, 80, v%d\ns_mov_b32 s%d, 0x3acccccd\ns_nop 4" % (vT, vT, vT, sT))
    for u in range(2):
        for r in range(4): a("ds_bpermute_b32 v%d, v%d, v%d offset:%d" % (vRSTD + 4 * u + r, vT, vG + 4 * u + r, 4 * r))
    for i in range(8): a("v_mul_f32 v%d, s%d, v%d" % (vMEAN + i, sT, vRS + i))
    a("s_waitcnt lgkmcnt(0)")
    for i in range(8): a("v_mul_f32 v%d, s%d, v%d" % (vRSTD + i, sT, vRSTD + i))
    for i in range(8): a("v_fma_f32 v%d, -v%d, v%d, v%d" % (vRSTD + i, vMEAN + i, vMEAN + i, vRSTD + i))
    for i in range(8): a("v_max_f32 v%d, 0, v%d\nv_add_f32 v%d, 0x3727c5ac, v%d" % (vRSTD + i, vRSTD + i, vRSTD + i, vRSTD + i))
    for i in range(8): a("v_rsq_f32 v%d, v%d" % (vRSTD + i, vRSTD + i))
    a("v_and_b32 v%d, 15, v0\nv_cmp_gt_u32 vcc, 8, v%d" % (vT, vT))
    for i in range(8): a("v_mul_f32 v%d, 0x3fb8aa3b, v%d" % (vRL + i, vRSTD + i))
    for T in range(5):
        for u in range(2):
            b = vKVA + (u * 5 + T) * 4; ls = []
            for r in range(4):
                l = ["v_fma_f32 v%d, -v%d, v%d, v%d" % (b + r, vMEAN + 4 * u + r, vCS + T * 4, b + r)]
                if T < 2: l += phi(a, b + r, b + r, vRL + 4 * u + r, vRSTD + 4 * u + r, vT + r)
                elif T == 2:
                    l += phi(a, b + r, vT + 4 + r, vRL + 4 * u + r, vRSTD + 4 * u + r, vT + r)
                    l += ["v_mul_f32 v%d, v%d, v%d" % (b + r, b + r, vRSTD + 4 * u + r), "v_cndmask_b32 v%d, v%d, v%d, vcc" % (b + r, b + r, vT + 4 + r)]
                else: l += ["v_mul_f32 v%d, v%d, v%d" % (b + r, b + r, vRSTD + 4 * u + r)]
                ls.append(l)
            for l in zipl(ls): a(l)
            a("v_cvt_pk_bf16_f32 v%d, v%d, v%d\nv_cvt_pk_bf16_f32 v%d, v%d, v%d" % (vF + T * 4 + u * 2, b, b + 1, vF + T * 4 + u * 2 + 1, b + 2, b + 3))
    a("s_nop 1")
    for i, (x, b) in enumerate(PAIRS): a(mfma(V(vP + 4 * i, 4), V(vF + 4 * x, 4), V(vF + 4 * b, 4), "0"))
    for x in range(3): a(mfma(V(vP + 28 + 4 * x, 4), V(vF + 4 * x, 4), V(vONE, 4), "0"))
    a("s_add_u32 s%d, s%d, %d" % (sT, sMX, SLOT))
    for i in range(10): a("v_lshl_add_u32 v%d, v%d, 1, s%d" % (vT + i, vTAB + i, sT))
    for i in range(10): a("ds_write_b128 v%d, %s" % (vT + i, V(vP + 4 * i, 4)))
    REDB = SLOT + 32768
    a("v_lshl_add_u32 v%d, s%d, 6, v0\nv_lshlrev_b32 v%d, 4, v%d\nv_add_u32 v%d, %d, v%d" % (vT + 10, sW, vT + 11, vT + 10, vT + 12, SLOT, vT + 11))
    a("s_lshl_b32 s%d, s%d, 4\ns_add_u32 s%d, s%d, s%d\ns_lshl_b32 s%d, s%d, 12\ns_add_u32 s%d, s%d, %d" % (sT, sJ, sT, sT, sRB, sT, sT, sT, sT, PART))
    a("s_waitcnt lgkmcnt(0) vmcnt(5)\ns_barrier")
    for i in range(4): a("ds_read_b128 %s, v%d offset:%d" % (V(vP + 4 * i, 4), vT + 12, i * 8192))
    a("v_mov_b32 v%d, 0\nv_mov_b32 v%d, 0\nv_mov_b32 v%d, %d\nds_write_b64 v%d, %s" % (vT, vT + 1, vT + 2, REDB + 2048, vT + 2, V(vT, 2)))
    a("s_waitcnt lgkmcnt(1)")
    for r in range(4): a("v_add_f32 v%d, v%d, v%d\nv_add_f32 v%d, v%d, v%d" % (vP + r, vP + r, vP + 4 + r, vP + 8 + r, vP + 8 + r, vP + 12 + r))
    for r in range(4): a("v_add_f32 v%d, v%d, v%d" % (vP + r, vP + r, vP + 8 + r))
    a("buffer_store_dwordx4 %s, v%d, s[%d:%d], s%d offen sc1" % (V(vP, 4), vT + 11, SWS, SWS + 3, sT))
    stamp(a, cfg, 8)
    a("v_and_b32 v%d, 3, v0\nv_cmp_eq_u32 s[%d:%d], 1, v%d\nv_cmp_eq_u32 s[%d:%d], 2, v%d\nv_cmp_eq_u32 vcc, 3, v%d" % (vT, sT, sT + 1, vT, sT + 2, sT + 3, vT, vT))
    a("v_and_b32 v%d, 15, v0\nv_lshrrev_b32 v%d, 2, v%d\nv_lshl_add_u32 v%d, v%d, 4, v%d\nv_lshlrev_b32 v%d, 2, v%d" % (vT, vT + 1, vT, vT, vT + 1, vT, vT, vT))
    for u in range(2):
        for k, src in enumerate((vMEAN, vRSTD)):
            s_ = src + 4 * u; t = vT + 1 + 2 * u + k
            a("v_cndmask_b32 v%d, v%d, v%d, s[%d:%d]\nv_cndmask_b32 v%d, v%d, v%d, s[%d:%d]\nv_cndmask_b32 v%d, v%d, v%d, vcc" % (t, s_, s_ + 1, sT, sT + 1, t, t, s_ + 2, sT + 2, sT + 3, t, t, s_ + 3))
            a("ds_bpermute_b32 v%d, v%d, v%d" % (vML + 4 * u + k, vT, t))
    vQA, vQC = 60, 84
    a("v_add_u32 v%d, %d, v%d" % (vWR, 2 * SLOT, vWR + 1))
    def qreads(i):
        return ["ds_read_b64_tr_b16 %s, v%d offset:%d" % (V(vWB + (i & 1) * 12 + T * 4 + h * 2, 2), vWR, (i >> 1) * 5120 + (i & 1) * 80 + h * 2560 + T * 32) for T in range(3) for h in range(2)]
    def qmf(i):
        o = []; c = lambda r: "0" if i == 0 else V(r, 4)
        for T in range(3):
            W = V(vWB + (i & 1) * 12 + T * 4, 4)
            for u in range(2): o.append(mfma(V(vQA + (u * 3 + T) * 4, 4), W, A((i * 2 + u) * 4, 4), c(vQA + (u * 3 + T) * 4)))
            o.append(mfma(V(vQC + T * 4, 4), W, V(vONE, 4), c(vQC + T * 4)))
        return o
    for l in qreads(0): a(l)
    for i in range(20):
        a("s_waitcnt lgkmcnt(0)")
        if i == cfg.get("flagat", 5):
            l = a.label("F")
            a("s_waitcnt vmcnt(0)\ns_barrier\ns_cmp_lg_u32 s%d, 0\ns_cbranch_scc1 %s" % (sW, l))
            a("s_lshl_b32 s%d, s%d, 4\nv_mov_b32 v%d, s%d\nv_mov_b32 v%d, 1\ns_mov_b64 exec, 1" % (sT, sJ, vT, sT, vT + 1))
            a("global_atomic_add v%d, v%d, s[%d:%d] sc1\ns_mov_b64 exec, -1\n%s:" % (vT, vT + 1, SDBG, SDBG + 1, l))
            stamp(a, cfg, 9)
        weave(a, qmf(i), qreads(i + 1) if i < 19 else [])
    stamp(a, cfg, 10)
    for u in range(2): a("v_mul_f32 v%d, 0x3fb8aa3b, v%d" % (vML + 4 * u + 2, vML + 4 * u + 1))
    a("v_cmp_gt_u32 vcc, 32, v0\ns_nop 5")
    for u in range(2):
        for T in range(3):
            b = vQA + (u * 3 + T) * 4; ls = []
            for r in range(4):
                ls.append(["v_fma_f32 v%d, -v%d, v%d, v%d" % (b + r, vML + 4 * u, vQC + T * 4 + r, b + r)] + phi(a, b + r, b + r, vML + 4 * u + 2, vML + 4 * u + 1, vT + r))
            for l in zipl(ls): a(l)
            d = vPQ + 8 * u + 2 * T
            a("v_cvt_pk_bf16_f32 v%d, v%d, v%d\nv_cvt_pk_bf16_f32 v%d, v%d, v%d" % (d, b, b + 1, d + 1, b + 2, b + 3))
            if T == 2: a("v_cndmask_b32 v%d, 0, v%d, vcc\nv_cndmask_b32 v%d, 0, v%d, vcc\nv_mov_b32 v%d, 0\nv_mov_b32 v%d, 0" % (d, d, d + 1, d + 1, d + 2, d + 3))
    l1, l2 = a.label("J"), a.label("J"); B = 44; sfl = cfg.get("jfl", "")
    a("s_cmp_eq_u32 s%d, 0\ns_cbranch_scc1 %s" % (sJT, l1))
    a("v_add_u32 v%d, s%d, v%d\nv_and_b32 v%d, 3, v0\nv_lshl_add_u32 v%d, v%d, 3, v%d\nv_lshlrev_b32 v%d, 4, v0" % (vT, sMX, vWR + 1, vT + 1, vT + 1, vT + 1, vT, vT + 2))
    for T in range(5):
        for h in range(2):
            a("ds_read_b64_tr_b16 %s, v%d offset:%d" % (V(B + T * 4 + h * 2, 2), vT + 1 if T < 4 else vT, h * 2560 + (64 * (T >> 1) + 8 * (T & 1) if T < 4 else 128)))
    a("s_add_u32 s%d, s%d, 4096\ns_waitcnt lgkmcnt(0)" % (sT, sJD))
    for T in range(5): a("buffer_store_dwordx4 %s, v%d, s[%d:%d], s%d offen offset:%d %s" % (V(B + T * 4, 4), vT + 2, SWS, SWS + 3, sJD if T < 4 else sT, (T & 3) * 1024, sfl))
    a("s_branch %s\n%s:" % (l2, l1))
    a("v_lshrrev_b32 v%d, 2, v0\nv_lshlrev_b32 v%d, 7, v%d\nv_and_b32 v%d, 1, v0\nv_lshl_add_u32 v%d, v%d, 3, v%d" % (vT, vT, vT, vT + 1, vT, vT + 1, vT))
    a("v_bfe_u32 v%d, v0, 1, 1\nv_mul_u32_u24 v%d, 4160, v%d\nv_bfe_u32 v%d, v0, 3, 2\nv_lshl_add_u32 v%d, v%d, 4, v%d" % (vT + 1, vT + 1, vT + 1, vT + 2, vT + 1, vT + 2, vT + 1))
    a("v_add3_u32 v%d, v%d, v%d, s%d" % (vT, vT, vT + 1, sMX))
    for T in range(8):
        a("v_xor_b32 v%d, %d, v%d" % (vT + 1 + (T & 1), T * 16, vT))
        for h in range(2): a("ds_read_b64_tr_b16 %s, v%d offset:%d" % (V(B + T * 4 + h * 2, 2), vT + 1 + (T & 1), h * 2048))
    a("v_and_b32 v%d, 0x31, v0\nv_bfe_u32 v%d, v0, 1, 2\nv_lshl_add_u32 v%d, v%d, 2, v%d\nv_bfe_u32 v%d, v0, 3, 1\nv_lshl_add_u32 v%d, v%d, 1, v%d\nv_lshlrev_b32 v%d, 4, v%d" % (vT + 3, vT + 4, vT + 3, vT + 4, vT + 3, vT + 4, vT + 3, vT + 4, vT + 3, vT + 3, vT + 3))
    a("s_add_u32 s%d, s%d, 4096\ns_waitcnt lgkmcnt(0)" % (sT, sJD))
    for T in range(8): a("buffer_store_dwordx4 %s, v%d, s[%d:%d], s%d offen offset:%d %s" % (V(B + T * 4, 4), vT + 3, SWS, SWS + 3, sJD if T < 4 else sT, (T & 3) * 1024, sfl))
    a("%s:" % l2)
    stamp(a, cfg, 11)
    lp, lq = a.label("P"), a.label("P")
    a("s_lshl_b32 s%d, s%d, 4\nv_mov_b32 v%d, s%d\ns_mov_b32 s%d, 200000" % (sT, sJ, vT, sT, sT + 1))
    a("%s:\nglobal_load_dword v%d, v%d, s[%d:%d] sc1\ns_waitcnt vmcnt(0)\nv_readfirstlane_b32 s%d, v%d" % (lp, vT + 1, vT, SDBG, SDBG + 1, sT, vT + 1))
    a("s_cmp_ge_u32 s%d, 16\ns_cbranch_scc1 %s\ns_sub_u32 s%d, s%d, 1\ns_cmp_lg_u32 s%d, 0\ns_cbranch_scc1 %s\n%s:" % (sT, lq, sT + 1, sT + 1, sT + 1, lp, lq))
    stamp(a, cfg, 12)
    a("s_lshl_b32 s%d, s%d, 16\ns_add_u32 s%d, s%d, %d" % (sT, sJ, sT, sT, PART))
    for i in range(16):
        a("buffer_load_dwordx4 %s, v%d, s[%d:%d], s%d offen sc1\ns_add_u32 s%d, s%d, 4096" % (V(B + 4 * i, 4), vT + 11, SWS, SWS + 3, sT, sT, sT))
    a("v_lshlrev_b32 v%d, 3, v%d\nv_add_u32 v%d, %d, v%d" % (vT, vT + 10, vT, REDB, vT))
    for i in range(7): a("v_add_u32 v%d, %d, v%d\nv_add_u32 v%d, %d, v%d" % (vTAB + i, REDB, vTAB + i, vTABZ + i, REDB, vTABZ + i))
    for i in range(1, 16):
        a("s_waitcnt vmcnt(%d)" % (15 - i))
        for r in range(0, 4, 2): a("v_pk_add_f32 %s, %s, %s" % (V(B + r, 2), V(B + r, 2), V(B + 4 * i + r, 2)))
    a("v_cvt_pk_bf16_f32 v%d, v%d, v%d\nv_cvt_pk_bf16_f32 v%d, v%d, v%d\nds_write_b64 v%d, %s\ns_waitcnt lgkmcnt(0)\ns_barrier" % (B, B, B + 1, B + 1, B + 2, B + 3, vT, V(B, 2)))
    stamp(a, cfg, 13)
    N, Z = 120, 136; pos = [0, 2, 4, 6, 8, 12, 14]
    for i in range(7): a("ds_read_b64 %s, v%d\nds_read_b64 %s, v%d" % (V(N + pos[i], 2), vTAB + i, V(Z + pos[i], 2), vTABZ + i))
    for r in (N + 10, N + 11, Z + 10, Z + 11): a("v_mov_b32 v%d, 0" % r)
    a("s_lshl_b32 s%d, s%d, 2\ns_add_u32 s%d, s%d, s%d\ns_mul_i32 s%d, s%d, 40960\ns_add_u32 s%d, s%d, %d" % (sT, sRB, sT, sT, sW, sT, sT, sT, sT, O_))
    a("s_lshl_b32 s%d, s%d, 10\ns_add_u32 s%d, s%d, s%d\ns_lshl_b32 s%d, s%d, 8\ns_add_u32 s%d, s%d, s%d\ns_add_u32 s%d, s%d, 16384" % (sT + 1, sJ, sT + 1, sT + 1, sT, sT + 2, sJ, sT + 2, sT + 2, sT, sT + 2, sT + 2))
    a("v_lshlrev_b32 v%d, 4, v0\nv_and_b32 v%d, 0xf0, v%d\nv_bfe_u32 v%d, v0, 4, 1\nv_lshl_add_u32 v%d, v%d, 3, v%d\ns_waitcnt lgkmcnt(0)" % (vT, vT + 1, vT, vT + 2, vT + 1, vT + 2, vT + 1))
    for u in range(2):
        q = vPQ + 8 * u
        for k, S in enumerate((N, Z)):
            d = B + u * 24 + k * 12
            a(mfma(V(d + 4, 4), V(S + 4, 4), V(q, 4), "0")); a(mfma(V(d, 4), V(S, 4), V(q, 4), "0"))
            a(mfma(V(d + 8, 4), V(S + 12, 4), V(q + 2, 4), "0")); a(mfma(V(d + 4, 4), V(S + 8, 4), V(q + 4, 4), V(d + 4, 4)))
    a("s_nop 7")
    ofl = cfg.get("ofl", "")
    for u in range(2):
        d = B + u * 24
        for t in range(3): a("v_add_f32 v%d, 0x358637bd, v%d" % (d + 12 + 4 * t, d + 12 + 4 * t))
        for t in range(3): a("v_rcp_f32 v%d, v%d" % (d + 12 + 4 * t, d + 12 + 4 * t))
        a("s_nop 0")
        for t in range(3):
            for r in range(4): a("v_mul_f32 v%d, v%d, v%d" % (d + 4 * t + r, d + 4 * t + r, d + 12 + 4 * t))
        for t in range(3):
            o = d + 12 + (4 if t == 0 else 2 * (t - 1))
            a("v_cvt_pk_bf16_f32 v%d, v%d, v%d\nv_cvt_pk_bf16_f32 v%d, v%d, v%d" % (o, d + 4 * t, d + 4 * t + 1, o + 1, d + 4 * t + 2, d + 4 * t + 3))
        a("buffer_store_dwordx4 %s, v%d, s[%d:%d], s%d offen %s" % (V(d + 12, 4), vT, SWS, SWS + 3, sT + 1, ofl))
        a("s_mov_b32 exec_lo, 0\nbuffer_store_dwordx2 %s, v%d, s[%d:%d], s%d offen %s\ns_mov_b32 exec_lo, -1" % (V(d + 16, 2), vT + 1, SWS, SWS + 3, sT + 2, ofl))
        if u == 0: a("s_add_u32 s%d, s%d, 20480\ns_add_u32 s%d, s%d, 20480" % (sT + 1, sT + 1, sT + 2, sT + 2))
    stamp(a, cfg, 14)
    stamp_dump(a, cfg, 0, 15)
    a("s_endpgm")
```

```python
from gen_common import *
def ld(dst, voff, srd_, soff, off=0, fl="", n=4):
    return "buffer_load_dwordx%d %s, v%d, s[%d:%d], s%d offen offset:%d %s" % (n, dst, voff, srd_, srd_ + 3, soff, off, fl)
def st(src, voff, srd_, soff, off=0, fl="", n=4):
    return "buffer_store_dwordx%d %s, v%d, s[%d:%d], s%d offen offset:%d %s" % (n, src, voff, srd_, srd_ + 3, soff, off, fl)
def tile_ids(a):
    a("s_lshr_b32 s46, s%d, 1\ns_and_b32 s47, s%d, 1\ns_lshl_b32 s48, s%d, 1\ns_add_u32 s47, s47, s48\ns_lshl_b32 s47, s47, 2\ns_add_u32 s47, s47, s%d" % (sJ, sJ, sRB, sW))
    a("s_mul_i32 s49, s47, 20480\ns_mul_i32 s48, s46, 160\ns_add_u32 s48, s48, s49\ns_add_u32 s49, s49, %d" % H_)
    a("s_lshr_b32 s50, s46, 1\ns_lshl_b32 s50, s50, 10\ns_add_u32 s50, s50, s49\ns_and_b32 s51, s46, 1\ns_lshl_b32 s51, s51, 3\ns_add_u32 s50, s50, s51\ns_add_u32 s50, s50, 16384")
    a("s_lshl_b32 s51, s46, 11\ns_add_u32 s49, s49, s51")
    a("v_lshlrev_b32 v2, 4, v0\nv_and_b32 v5, 15, v0\nv_mul_u32_u24 v5, 1280, v5\nv_lshrrev_b32 v6, 4, v0\nv_lshl_add_u32 v3, v6, 4, v5\nv_lshl_add_u32 v4, v6, 3, v5")
def add_res(a, acc, res, t):
    for i in range(10):
        a("v_lshlrev_b32 v%d, 16, v%d\nv_and_b32 v%d, 0xffff0000, v%d" % (t, res + i, t + 1, res + i))
        a("v_add_f32 v%d, v%d, v%d\nv_add_f32 v%d, v%d, v%d\nv_cvt_pk_bf16_f32 v%d, v%d, v%d" % (acc + 2 * i, acc + 2 * i, t, acc + 2 * i + 1, acc + 2 * i + 1, t + 1, res + i, acc + 2 * i, acc + 2 * i + 1))
def k2(a, cfg):
    prologue(a, cfg, [(0, SX, 2621440), (72, SWS, WSZ)])
    stamp(a, cfg, 0)
    tile_ids(a)
    vB, vAcc, vRes, vT = 16, 56, 76, 8
    a("s_lshr_b32 s%d, s47, 2\ns_add_u32 s%d, s%d, s46" % (sT, sT, sT)); smod(a, sT, sT, 5, sT + 1)
    if not cfg.get("rot", 1): a("s_mov_b32 s%d, 0" % sT)
    a("s_mul_i32 s52, s%d, 5120\ns_mul_i32 s53, s46, 102400\ns_add_u32 s53, s53, s52\ns_mul_i32 s54, s47, 20480\ns_add_u32 s54, s54, %d" % (sW, O_))
    if WO: a("s_add_u32 s53, s53, %d" % WO)
    for p in range(5):
        a("s_mul_i32 s41, s40, 20480\ns_add_u32 s41, s41, s53\ns_lshl_b32 s42, s40, 12\ns_add_u32 s42, s42, s54")
        for n in range(5):
            d = dma(52, p * 20480 + n * 1024, 2, SWS, 41); a(d[0]); a("s_nop 0"); a(d[1]); a("s_add_u32 s41, s41, 1024")
        for e in range(4): a(ld(A((p * 4 + e) * 4, 4), 2, SWS, 42, e * 1024, cfg.get("lfl", "")))
        if p < 4: a("s_add_u32 s40, s40, 1\ns_cmp_eq_u32 s40, 5\ns_cselect_b32 s40, 0, s40")
    a(ld(V(vRes, 4), 3, SX, 48, 0)); a(ld(V(vRes + 4, 4), 3, SX, 48, 64)); a(ld(V(vRes + 8, 2), 4, SX, 48, 128, n=2))
    a("v_add_u32 v7, 61440, v2")
    def reads(i): return ["ds_read_b128 %s, v%d offset:%d" % (V(vB + (i & 1) * 20 + T * 4, 4), 2 if i < 12 else 7, (i % 12) * 5120 + T * 1024) for T in range(5)]
    def mf(i): return [mfma(V(vAcc + 4 * T, 4), V(vB + (i & 1) * 20 + T * 4, 4), A(i * 4, 4), "0" if i == 0 else V(vAcc + 4 * T, 4)) for T in range(5)]
    stamp(a, cfg, 1)
    a("s_waitcnt vmcnt(39)\ns_barrier")
    stamp(a, cfg, 2)
    for l in reads(0): a(l)
    for i in range(20):
        if i < 19 and (i + 1) % 4 == 0: a("s_waitcnt vmcnt(%d)\ns_barrier" % (39 - 9 * ((i + 1) // 4)))
        if i < 19:
            for l in reads(i + 1): a(l)
            a("s_waitcnt lgkmcnt(5)")
        else: a("s_waitcnt lgkmcnt(0)")
        for l in mf(i): a(l)
    stamp(a, cfg, 3)
    a("s_waitcnt vmcnt(0)\ns_nop 7")
    add_res(a, vAcc, vRes, vT)
    fl = cfg.get("ofl", "")
    a(st(V(vRes, 4), 2, SWS, 49, 0, fl)); a(st(V(vRes + 4, 4), 2, SWS, 49, 1024, fl)); a(st(V(vRes + 8, 2), 2, SWS, 50, 0, fl, n=2))
    a("v_mov_b32 v10, 0\nv_mov_b32 v11, 0\nv_mov_b32 v12, 0x3f803f80")
    for i in range(10): a("v_dot2c_f32_bf16 v10, v%d, v12\nv_dot2c_f32_bf16 v11, v%d, v%d" % (vRes + i, vRes + i, vRes + i))
    for sw in ("32", "16"):
        a("s_nop 1\nv_mov_b32 v12, v10\nv_mov_b32 v13, v11\ns_nop 1\nv_permlane%s_swap_b32 v10, v12\nv_permlane%s_swap_b32 v11, v13\ns_nop 1\nv_add_f32 v10, v10, v12\nv_add_f32 v11, v11, v13" % (sw, sw))
    a("s_lshl_b32 s40, s47, 10\ns_lshl_b32 s41, s46, 3\ns_add_u32 s40, s40, s41\ns_add_u32 s40, s40, %d\nv_lshlrev_b32 v12, 6, v0\ns_mov_b64 exec, 0xffff" % STAT)
    a(st(V(10, 2), 12, SWS, 40, 0, fl, n=2))
    stamp(a, cfg, 4); stamp_dump(a, cfg, 1, 5)
    a("s_endpgm")
def k3(a, cfg):
    prologue(a, cfg, [(72, SWS, WSZ)])
    stamp(a, cfg, 0)
    vONE, vCS, vB, vAcc, vS, vO = 8, 12, 24, 88, 184, 200
    lfl = cfg.get("lfl", "")
    a("v_lshlrev_b32 v2, 4, v0\nv_lshl_add_u32 v3, s%d, 6, v0\nv_and_b32 v3, 127, v3\nv_lshlrev_b32 v4, 6, v3" % sW)
    a("s_lshl_b32 s41, s%d, 13\ns_add_u32 s41, s41, %d" % (sRB, STAT))
    for i in range(4): a(ld(V(vS + 4 * i, 4), 4, SWS, 41, 16 * i, lfl))
    a("s_add_u32 s40, s%d, s%d" % (sRB, sJ)); smod(a, 40, 40, 10, 41); a("s_lshl_b32 s40, s40, 1")
    if not cfg.get("rot", 1): a("s_mov_b32 s40, 0")
    a("s_lshl_b32 s44, s%d, 2\ns_add_u32 s44, s44, s%d\ns_mul_i32 s44, s44, 40960\ns_add_u32 s44, s44, %d" % (sRB, sW, H_))
    a("s_lshl_b32 s45, s%d, 2\ns_add_u32 s45, s45, s%d\ns_mul_i32 s45, s45, 3072\ns_add_u32 s45, s45, %d\ns_lshl_b32 s46, s%d, 11" % (sJ, sW, WGU, sW))
    def fill(i):
        d0 = dma(46, (i % 16) * 8192, 2, SWS, 41, lfl); d1 = dma(46, (i % 16) * 8192 + 1024, 2, SWS, 41, lfl)
        o = ["s_lshl_b32 s41, s40, 10\n" + d0[0] + "\ns_add_u32 s41, s41, s44\n" + d0[1], d1[0] + "\ns_add_u32 s41, s41, 20480\n" + d1[1],
             "s_mul_i32 s42, s40, 196608\ns_add_u32 s42, s42, s45\n" + ld(A(i * 12, 4), 2, SWS, 42, 0)]
        o += [ld(A(i * 12 + 4, 4), 2, SWS, 42, 1024), ld(A(i * 12 + 8, 4), 2, SWS, 42, 2048) + "\ns_add_u32 s40, s40, 1\ns_cmp_eq_u32 s40, 20\ns_cselect_b32 s40, 0, s40"]
        return o
    for i in range(10):
        for l in fill(i): a(l)
    for i in range(4): a("v_mov_b32 v%d, 0x3f803f80" % (vONE + i))
    a("v_add_u32 v5, 0x10000, v2\nv_lshlrev_b32 v6, 3, v3\nv_add_u32 v6, 0x20000, v6\ns_mov_b32 s47, 0x3acccccd\ns_waitcnt vmcnt(50)")
    for i in range(1, 8): a("v_pk_add_f32 %s, %s, %s" % (V(vS, 2), V(vS, 2), V(vS + 2 * i, 2)))
    a("v_mul_f32 v%d, s47, v%d\nv_mul_f32 v%d, s47, v%d\nv_fma_f32 v%d, -v%d, v%d, v%d" % (vS, vS, vS + 1, vS + 1, vS + 1, vS, vS, vS + 1))
    a("v_max_f32 v%d, 0, v%d\nv_add_f32 v%d, 0x3727c5ac, v%d\nv_rcp_f32 v%d, v%d\ns_nop 0\nds_write_b64 v6, %s" % (vS + 1, vS + 1, vS + 1, vS + 1, vS + 1, vS + 1, V(vS, 2)))
    for i in (10, 11):
        for l in fill(i): a(l)
    def reads(i): return ["ds_read_b128 %s, v%d offset:%d" % (V(vB + (i & 1) * 32 + u * 4, 4), 2 if (i % 16) < 8 else 5, (i % 8) * 8192 + u * 1024) for u in range(8)]
    def mf(i):
        o = []; c = lambda r: "0" if i == 0 else V(r, 4)
        for u in range(8):
            for t in range(3): o.append(mfma(V(vAcc + (u * 3 + t) * 4, 4), A(i * 12 + t * 4, 4), V(vB + (i & 1) * 32 + u * 4, 4), c(vAcc + (u * 3 + t) * 4)))
        for t in range(3): o.append(mfma(V(vCS + t * 4, 4), A(i * 12 + t * 4, 4), V(vONE, 4), c(vCS + t * 4)))
        return o
    stamp(a, cfg, 1)
    a("s_waitcnt vmcnt(50)\ns_barrier")
    stamp(a, cfg, 2)
    for l in reads(0): a(l)
    for i in range(20):
        a("s_waitcnt lgkmcnt(0)"); fl = []
        if i < 19 and i & 1:
            p = (i + 1) // 2
            a("s_waitcnt vmcnt(%d)\ns_barrier" % (10 * (min(p + 4, 9) - p)))
            if p + 5 <= 9: fl = fill(2 * p + 10) + fill(2 * p + 11)
        weave(a, mf(i), (reads(i + 1) if i < 19 else []) + fl)
    stamp(a, cfg, 3)
    a("v_and_b32 v6, 15, v0\nv_lshlrev_b32 v7, 3, v6\nv_add_u32 v7, 0x20000, v7")
    for u in range(8): a("ds_read_b64 %s, v7 offset:%d" % (V(vS + 2 * u, 2), u * 128))
    a("v_lshrrev_b32 v7, 4, v0\nv_mul_u32_u24 v7, 49152, v7\nv_lshl_add_u32 v7, v6, 4, v7")
    a("s_mul_i32 s40, s%d, %d\ns_mul_i32 s41, s%d, 3072\ns_add_u32 s40, s40, s41\ns_lshl_b32 s41, s%d, 8\ns_add_u32 s40, s40, s41\ns_add_u32 s40, s40, %d\ns_waitcnt lgkmcnt(0)" % (sRB, 8 * 49152, sJ, sW, ACT))
    ofl = cfg.get("ofl", "")
    for G in range(2):
        for t in range(3):
            ls = []
            for uu in range(4):
                u = G * 4 + uu; b = vAcc + (u * 3 + t) * 4; m = V(vS + 2 * u, 2)
                ls.append(["v_pk_fma_f32 %s, %s, %s, %s op_sel_hi:[0,1,1] neg_lo:[1,0,0] neg_hi:[1,0,0]" % (V(b, 2), m, V(vCS + 4 * t, 2), V(b, 2)),
                           "v_pk_fma_f32 %s, %s, %s, %s op_sel_hi:[0,1,1] neg_lo:[1,0,0] neg_hi:[1,0,0]" % (V(b + 2, 2), m, V(vCS + 4 * t + 2, 2), V(b + 2, 2)),
                           "v_max_f32 v%d, 0, v%d" % (b, b), "v_max_f32 v%d, 0, v%d" % (b + 1, b + 1),
                           "v_pk_mul_f32 %s, %s, %s op_sel:[0,1] op_sel_hi:[1,1]" % (V(b + 2, 2), V(b + 2, 2), m),
                           "v_pk_mul_f32 %s, %s, %s" % (V(b, 2), V(b, 2), V(b + 2, 2)),
                           "v_cvt_pk_bf16_f32 v%d, v%d, v%d" % (vO + t * 8 + u, b, b + 1)])
            for k in range(7):
                for l in ls: a(l[k])
        a("s_nop 1")
        for t in range(3):
            r = vO + t * 8 + G * 4; a("v_permlane32_swap_b32 v%d, v%d\nv_permlane32_swap_b32 v%d, v%d" % (r, r + 2, r + 1, r + 3))
        a("s_nop 1")
        for t in range(3):
            r = vO + t * 8 + G * 4; a("v_permlane16_swap_b32 v%d, v%d\nv_permlane16_swap_b32 v%d, v%d" % (r, r + 1, r + 2, r + 3))
        a("s_nop 1")
        for t in range(3): a(st(V(vO + t * 8 + G * 4, 4), 7, SWS, 40, t * 1024, ofl))
        if G == 0: a("s_add_u32 s40, s40, %d" % (4 * 49152))
    stamp(a, cfg, 4); stamp_dump(a, cfg, 2, 5)
    a("s_endpgm")
def k4(a, cfg):
    prologue(a, cfg, [(72, SWS, WSZ), (56, SOUT, 2621440)])
    stamp(a, cfg, 0)
    tile_ids(a)
    vRes, vAcc, vX, vT = 16, 28, 108, 8
    lfl = cfg.get("lfl", "")
    a(ld(V(vRes, 4), 2, SWS, 49, 0, lfl)); a(ld(V(vRes + 4, 4), 2, SWS, 49, 1024, lfl)); a(ld(V(vRes + 8, 2), 2, SWS, 50, 0, lfl, n=2))
    a("s_lshr_b32 s40, s47, 2\ns_add_u32 s40, s40, s46"); smod(a, 40, 40, 12, 41)
    if not cfg.get("rot", 1): a("s_mov_b32 s40, 0")
    for u in range(4):
        a("s_add_u32 s41, s%d, %d\ns_and_b32 s41, s41, 3\ns_mul_i32 s42, s41, 49152\nv_add_u32 v%d, s42, v2" % (sW, u, 10 + u))
        if u: a("s_mul_i32 s%d, s41, 15360" % (54 + u))
    a("v_add_u32 v14, 4096, v2")
    a("s_lshr_b32 s52, s47, 2\ns_mul_i32 s52, s52, %d\ns_mul_i32 s41, s%d, 12288\ns_add_u32 s52, s52, s41\ns_add_u32 s52, s52, %d" % (4 * 49152, sW, ACT))
    a("s_lshl_b32 s53, s46, 2\ns_add_u32 s53, s53, s%d\ns_mul_i32 s53, s53, 61440\ns_add_u32 s53, s53, %d" % (sW, WD))
    def fill(i):
        o = ["s_lshl_b32 s41, s40, 10\ns_add_u32 s41, s41, s52\ns_mul_i32 s42, s40, 5120\ns_add_u32 s42, s42, s53"]
        for u in range(4): o.append(ld(V(vX + (i % 8) * 16 + u * 4, 4), 10 + u, SWS, 41, 0, lfl))
        for T in range(5): o.append(ld(A(i * 20 + T * 4, 4), 2 if T < 4 else 14, SWS, 42, (T & 3) * 1024))
        o.append("s_add_u32 s40, s40, 1\ns_cmp_eq_u32 s40, 12\ns_cselect_b32 s40, 0, s40")
        return o
    for i in range(6):
        for l in fill(i): a(l)
    stamp(a, cfg, 1)
    for i in range(12):
        a("s_waitcnt vmcnt(%d)" % (9 * (min(i + 5, 11) - i)))
        if i == 0: stamp(a, cfg, 2)
        m = [mfma(V(vAcc + (u * 5 + T) * 4, 4), A(i * 20 + T * 4, 4), V(vX + (i % 8) * 16 + u * 4, 4), "0" if i == 0 else V(vAcc + (u * 5 + T) * 4, 4)) for u in (1, 2, 3, 0) for T in range(5)]
        weave(a, m, fill(i + 6) if i + 6 < 12 else [])
    stamp(a, cfg, 3)
    for u in range(1, 4):
        a("v_add_u32 v%d, s%d, v2" % (vT, 54 + u))
        if u == 1: a("s_mul_i32 s41, s%d, 15360\nv_add_u32 v9, s41, v2" % sW)
        for T in range(5): a("ds_write_b128 v%d, %s offset:%d" % (vT, V(vAcc + (u * 5 + T) * 4, 4), (u - 1) * 5120 + T * 1024))
    a("s_waitcnt lgkmcnt(0)\ns_barrier")
    for k in range(15): a("ds_read_b128 %s, v9 offset:%d" % (V(vX + 4 * k, 4), k * 1024))
    for k in range(3):
        a("s_waitcnt lgkmcnt(%d)" % (10 - 5 * k))
        for i in range(0, 20, 2): a("v_pk_add_f32 %s, %s, %s" % (V(vAcc + i, 2), V(vAcc + i, 2), V(vX + 20 * k + i, 2)))
    add_res(a, vAcc, vRes, vT)
    a(st(V(vRes, 4), 3, SOUT, 48, 0)); a(st(V(vRes + 4, 4), 3, SOUT, 48, 64)); a(st(V(vRes + 8, 2), 4, SOUT, 48, 128, n=2))
    stamp(a, cfg, 4); stamp_dump(a, cfg, 3, 5)
    a("s_endpgm")
```

```python
import sys, re
from gen_common import *
from gen_k1 import k1
from gen_k234 import k2, k3, k4
def fixup(lines):
    out = []
    for i, l in enumerate(lines):
        s = l.strip()
        if s.startswith("v_"):
            need = 0; d = 0
            for p in reversed(out[-2:]):
                p = p.strip()
                if p.startswith("s_nop"): d += int(p.split()[1])
                if p.startswith("v_cmp"):
                    dst = p.split()[1].rstrip(",")
                    if dst in s.split(None, 1)[1] and not (s.startswith("v_cmp") and s.split()[1].rstrip(",") == dst): need = max(need, 2 - d)
                d += 1
            if need > 0: out.append("    s_nop %d" % (need - 1))
        out.append(l)
    return out
def gen(cfg):
    a = Asm()
    hdr = "".join(l for l in open("cdna_kernels/%s.s.ref" % NAME) if l.startswith("; ") and "@launch" not in l and "Override" not in l and "grid=ceil" not in l)
    ks = [("k1_kernel", k1, 159744), ("k2_kernel", k2, 102400), ("k3_kernel", k3, 132096), ("k4_kernel", k4, 61440)]
    for n, f, lds in ks: hdr += "; @launch kernel=%s grid=(256,1,1) block=(256,1,1) lds=%d\n" % (n, lds)
    for n, f, lds in ks:
        kernel_begin(a, n); f(a, cfg)
    a.l = fixup(a.l)
    return hdr + HDR + a.text() + "".join(kernel_desc(n, 512, 256) for n, f, lds in ks)
if __name__ == "__main__":
    cfg = {"map": "8x1"}
    for x in sys.argv[2:]:
        k, v = x.split("="); cfg[k] = int(v) if v.lstrip("-").isdigit() else v.replace("_", " ")
    open(sys.argv[1], "w").write(gen(cfg))
```
